```python
import torch

def _softmax(x, axis=-1):
    return torch.softmax(x, dim=axis)
def _gelu(x):
    return torch.nn.functional.gelu(x, approximate="tanh")
def _silu(x):
    return torch.nn.functional.silu(x)
def _sigmoid(x):
    return torch.sigmoid(x)
def _layernorm(x, axis=-1, eps=1e-5):
    m = x.mean(dim=axis, keepdim=True)
    v = x.var(dim=axis, keepdim=True, unbiased=False)
    return (x - m) / torch.sqrt(v + eps)
def _scatter_add(tgt, idx, src, axis=0):
    return tgt.clone().index_add_(axis, idx, src)
def _segment_sum(src, seg, n):
    out = torch.zeros((n,) + src.shape[1:], dtype=src.dtype)
    return out.index_add_(0, seg, src)
def _pad(x, pw):
    flat = tuple(v for pair in reversed(pw) for v in pair)
    return torch.nn.functional.pad(x, flat)

kernel_name = 'sequential_preLN__compressed_kv_cla__swiglu_ffn__decode'

def setup_inputs():

    _w = (lambda a: (lambda t: t.to(torch.bfloat16) if t.is_floating_point() else t)(torch.as_tensor(a)))
    def _A_setup():
        B, H, Sq, Sk, D, M = 2, 32, 1, 16384, 128, 576
        Dc = 4 * D
        return {
            "x": _w((lambda *s: torch.randn(*s, dtype=torch.bfloat16) * 0.05)(B, Sq, M)),
            "c_kv": _w((lambda *s: torch.randn(*s, dtype=torch.bfloat16) * 0.4)(B, Sk, Dc)),
            "w_q": _w((lambda *s: torch.randn(*s, dtype=torch.bfloat16) * 3.2)(M, H, D) * (M ** -0.5)),
            "w_uk": _w((lambda *s: torch.randn(*s, dtype=torch.bfloat16) * 3.2)(Dc, H, D) * (Dc ** -0.5)),
            "w_uv": _w((lambda *s: torch.randn(*s, dtype=torch.bfloat16) * 0.4)(Dc, H, D) * (Dc ** -0.5)),
            "w_o": _w((lambda *s: torch.randn(*s, dtype=torch.bfloat16) * 0.4)(H, D, M) * ((H * D) ** -0.5)),
        }
    _A_in = _A_setup()

    def _B_setup():
        B, S, D, F = 2, 1, 576, 4608
        return {
            "x": _w((lambda *s: torch.randn(*s, dtype=torch.bfloat16) * 0.05)(B, S, D)),
            "w_gate": _w((lambda *s: torch.randn(*s, dtype=torch.bfloat16) * 0.05)(D, F)),
            "w_up": _w((lambda *s: torch.randn(*s, dtype=torch.bfloat16) * 0.05)(D, F)),
            "w_down": _w((lambda *s: torch.randn(*s, dtype=torch.bfloat16) * 0.05)(F, D)),
        }
    _B_in = _B_setup()

    return {
        "A_x": _A_in["x"],
        "A_c_kv": _A_in["c_kv"],
        "A_w_q": _A_in["w_q"],
        "A_w_uk": _A_in["w_uk"],
        "A_w_uv": _A_in["w_uv"],
        "A_w_o": _A_in["w_o"],
        "B_x": _B_in["x"],
        "B_w_gate": _B_in["w_gate"],
        "B_w_up": _B_in["w_up"],
        "B_w_down": _B_in["w_down"],
    }

def reference(A_x, A_c_kv, A_w_q, A_w_uk, A_w_uv, A_w_o, B_x, B_w_gate, B_w_up, B_w_down):
    def _A_ref(x, c_kv, w_q, w_uk, w_uv, w_o):
        B, Sq, M = x.shape[0], x.shape[1], x.shape[2]
        Sk = c_kv.shape[1]
        H, D = w_q.shape[1], w_q.shape[2]
        q = torch.einsum("bqm,mhd->bhqd", x, w_q)
        k = torch.einsum("bkc,chd->bhkd", c_kv, w_uk)
        v = torch.einsum("bkc,chd->bhkd", c_kv, w_uv)
        scores = torch.einsum("bhqd,bhkd->bhqk", q, k) * (D ** -0.5)
        off = Sk - Sq
        qi = torch.arange(Sq)[:, None]
        kj = torch.arange(Sk)[None, :]
        cmask = kj <= (qi + off)
        scores = torch.where(cmask[None, None], scores, -1e9)
        p = _softmax(scores, axis=-1)
        ctx = torch.einsum("bhqk,bhkd->bhqd", p, v)
        return torch.einsum("bhqd,hdm->bqm", ctx, w_o)

    def _B_ref(x, w_gate, w_up, w_down):
        g = _silu(x @ w_gate)
        u = x @ w_up
        return (g * u) @ w_down

    x = A_x
    h = x + _A_ref(_layernorm(x, axis=-1), A_c_kv, A_w_q, A_w_uk, A_w_uv, A_w_o)
    h2 = h + _B_ref(_layernorm(h, axis=-1), B_w_gate, B_w_up, B_w_down)
    return h2
```

```python
class Asm:
    def __init__(self):
        self.lines = []
        self.lab = 0
    def __call__(self, s):
        for l in s.strip("\n").split("\n"):
            self.lines.append("    " + l.strip())
    def label(self, name):
        self.lines.append(name + ":")
    def newlabel(self, base):
        self.lab += 1
        return "%s_%d" % (base, self.lab)
    def raw(self, s):
        self.lines.append(s)
    def text(self):
        return "\n".join(self.lines) + "\n"

    def srd(self, d, p, nbytes, off=0):
        if off:
            self(f"s_add_u32 s{d}, s{p}, {off:#x}")
            self(f"s_addc_u32 s{d+1}, s{p+1}, 0")
            self(f"s_and_b32 s{d+1}, s{d+1}, 0xffff")
        else:
            self(f"s_mov_b32 s{d}, s{p}")
            self(f"s_and_b32 s{d+1}, s{p+1}, 0xffff")
        self(f"s_mov_b32 s{d+2}, {nbytes:#x}")
        self(f"s_mov_b32 s{d+3}, 0x20000")

    def rne_bf16(self, vd, vs):
        self(f"v_cvt_pk_bf16_f32 v{vd}, v{vs}, v{vs}")
        self(f"v_and_b32 v{vd}, 0xffff0000, v{vd}")

    def wave_reduce(self, v, op="add"):
        ins = {"add": "v_add_f32_dpp", "max": "v_max_f32_dpp"}[op]
        for sh in (1, 2, 4, 8):
            self("s_nop 1")
            self(f"{ins} v{v}, v{v}, v{v} row_shr:{sh} row_mask:0xf bank_mask:0xf")
        self("s_nop 1")
        self(f"{ins} v{v}, v{v}, v{v} row_bcast:15 row_mask:0xa bank_mask:0xf")
        self("s_nop 1")
        self(f"{ins} v{v}, v{v}, v{v} row_bcast:31 row_mask:0xc bank_mask:0xf")
        self("s_nop 1")

    def row16_reduce(self, vs, op="add"):
        ins = {"add": "v_add_f32_dpp", "max": "v_max_f32_dpp"}[op]
        for sh in (1, 2, 4, 8):
            self("s_nop 1")
            for v in vs:
                self(f"{ins} v{v}, v{v}, v{v} row_shr:{sh} row_mask:0xf bank_mask:0xf")
        self("s_nop 1")

    def unpack8(self, src, dst):
        for k in range(4):
            self(f"v_lshlrev_b32 v{dst+2*k}, 16, v{src+k}")
            self(f"v_and_b32 v{dst+2*k+1}, 0xffff0000, v{src+k}")

    def pkfma8(self, acc0, acc1, w, xp):
        for k in range(4):
            self(f"v_pk_fma_f32 v[{acc0+2*k}:{acc0+2*k+1}], v[{w+2*k}:{w+2*k+1}], v[{xp}:{xp+1}], v[{acc0+2*k}:{acc0+2*k+1}] op_sel:[0,0,0] op_sel_hi:[1,0,1]")
            self(f"v_pk_fma_f32 v[{acc1+2*k}:{acc1+2*k+1}], v[{w+2*k}:{w+2*k+1}], v[{xp}:{xp+1}], v[{acc1+2*k}:{acc1+2*k+1}] op_sel:[0,1,0] op_sel_hi:[1,1,1]")


def kernel_header(name):
    return f".globl {name}\n.p2align 8\n.type {name},@function\n{name}:\n"

def kernel_desc(name, nvgpr, nsgpr=102, accum=None):
    if accum is None:
        accum = (nvgpr + 3) // 4 * 4
    return f""".p2align 6
.amdhsa_kernel {name}
  .amdhsa_next_free_vgpr {nvgpr}
  .amdhsa_next_free_sgpr {nsgpr}
  .amdhsa_accum_offset {accum}
  .amdhsa_group_segment_fixed_size 0
  .amdhsa_kernarg_size 104
  .amdhsa_user_sgpr_count 2
  .amdhsa_user_sgpr_kernarg_segment_ptr 1
  .amdhsa_system_sgpr_workgroup_id_x 1
  .amdhsa_float_denorm_mode_32 3
.end_amdhsa_kernel
"""
```

```python
import sys, math, struct
from asmlib import Asm, kernel_header, kernel_desc

def f32bits(x):
    return struct.unpack("<I", struct.pack("<f", x))[0]

WS_QF   = 0x000000
WS_HACC = 0x010000
WS_STAT = 0x020000
WS_CTXP = 0x040000
WS_OUTP = 0x100000
WS_PART = 0x400000
WS_SIZE = 0x1000000

SCALE = (128 ** -0.5) * math.log2(math.e)

def prologue(a, ngrid, ptrs):
    a(f"s_cmp_ge_u32 s2, {ngrid}")
    a("s_cbranch_scc1 " + a.end)
    for s, off in ptrs:
        a(f"s_load_dwordx2 s[{s}:{s+1}], s[0:1], {off}")
    a("v_and_b32 v1, 63, v0")
    a("v_lshrrev_b32 v2, 6, v0")
    a("s_nop 0")
    a("v_readfirstlane_b32 s3, v2")
    a("s_waitcnt lgkmcnt(0)")

def layernorm(a, V, T, lds_base_v, smask):
    vS, vM, vR, vD, vSD, vQ = T, T + 1, T + 2, T + 3, T + 4, T + 5
    a(f"v_add_f32 v{vS}, v{V}, v{V+1}")
    for k in range(2, 10):
        a(f"v_add_f32 v{vS}, v{vS}, v{V+k}")
    a.wave_reduce(vS, "add")
    a(f"v_readlane_b32 s40, v{vS}, 63")
    a("s_nop 3")
    a(f"v_mov_b32 v{vM}, s40")
    a(f"v_mul_f32 v{vM}, {f32bits(1.0/576):#x}, v{vM}")
    a(f"v_mov_b32 v{vS}, 0")
    for k in range(10):
        a(f"v_sub_f32 v{vD}, v{V+k}, v{vM}")
        if k >= 8:
            a(f"v_cndmask_b32 v{vD}, 0, v{vD}, s[{smask}:{smask+1}]")
        a(f"v_fmac_f32 v{vS}, v{vD}, v{vD}")
    a.wave_reduce(vS, "add")
    a(f"v_readlane_b32 s40, v{vS}, 63")
    a("s_nop 3")
    a(f"v_mov_b32 v{vSD}, s40")
    a(f"v_mul_f32 v{vSD}, {f32bits(1.0/576):#x}, v{vSD}")
    a.rne_bf16(vSD, vSD)
    a(f"v_add_f32 v{vSD}, {f32bits(1e-5):#x}, v{vSD}")
    a.rne_bf16(vSD, vSD)
    a(f"v_sqrt_f32 v{vSD}, v{vSD}")
    a("s_nop 0")
    a.rne_bf16(vSD, vSD)
    a(f"v_rcp_f32 v{vR}, v{vSD}")
    a.rne_bf16(vM, vM)
    for k in range(10):
        a(f"v_sub_f32 v{vD}, v{V+k}, v{vM}")
        a.rne_bf16(vD, vD)
        a(f"v_mul_f32 v{vQ}, v{vD}, v{vR}")
        a(f"v_fma_f32 v{V+k}, -v{vQ}, v{vSD}, v{vD}")
        a(f"v_fma_f32 v{vQ}, v{V+k}, v{vR}, v{vQ}")
        a.rne_bf16(V + k, vQ)
    for k in range(4):
        a(f"ds_write_b32 v{lds_base_v}, v{V+2*k} offset:{k*1024}")
        a(f"ds_write_b32 v{lds_base_v}, v{V+2*k+1} offset:{k*1024+8}")
    a(f"s_mov_b64 s[42:43], exec")
    a(f"s_mov_b64 exec, s[{smask}:{smask+1}]")
    a(f"ds_write_b32 v{lds_base_v}, v{V+8} offset:{4*1024}")
    a(f"ds_write_b32 v{lds_base_v}, v{V+9} offset:{4*1024+8}")
    a(f"s_mov_b64 exec, s[42:43]")

def gen_k1():
    a = Asm(); a.end = "K1_END"
    XS, QS, RED = 0, 4608, 8192
    prologue(a, 256, [(4, 0), (6, 16), (8, 24), (10, 96)])
    a.srd(12, 4, 2304)
    a.srd(16, 6, 576 * 8192)
    a.srd(20, 8, 512 * 8192)
    a.srd(24, 10, WS_SIZE)
    a("s_and_b32 s28, s2, 31")
    a("s_lshr_b32 s29, s2, 5")
    a("v_cmp_gt_u32 s[44:45], 32, v1")
    a("v_mov_b32 v14, 0")
    a("s_mul_i32 s30, s3, 1152")
    a("v_lshlrev_b32 v3, 2, v1")
    Lskipx = a.newlabel("K1_NOX")
    a("s_cmp_ge_u32 s3, 2")
    a(f"s_cbranch_scc1 {Lskipx}")
    for k in range(4):
        a(f"buffer_load_dword v{10+k}, v3, s[12:15], s30 offen offset:{k*256}")
    a("s_mov_b64 s[42:43], exec")
    a("s_mov_b64 exec, s[44:45]")
    a("buffer_load_dword v14, v3, s[12:15], s30 offen offset:1024")
    a("s_mov_b64 exec, s[42:43]")
    a.label(Lskipx)
    W = 64
    a("v_lshrrev_b32 v4, 4, v1")
    a("v_and_b32 v5, 15, v1")
    a("s_mul_i32 s31, s3, 144")
    a("v_add_u32 v6, s31, v4")
    a("v_lshlrev_b32 v6, 13, v6")
    a("s_lshl_b32 s32, s28, 8")
    a("v_lshl_add_u32 v7, v5, 4, s32")
    a("v_add_u32 v6, v6, v7")
    for i in range(36):
        a(f"s_mov_b32 s33, {i*32768}")
        a(f"buffer_load_dwordx4 v[{W+4*i}:{W+4*i+3}], v6, s[16:19], s33 offen")
    U = 208
    a("s_lshl_b32 s33, s29, 6")
    a("s_lshl_b32 s34, s3, 4")
    a("s_add_u32 s33, s33, s34")
    a("v_add_u32 v8, s33, v4")
    a("v_lshlrev_b32 v8, 13, v8")
    a("v_add_u32 v8, v8, v7")
    for i in range(4):
        a(f"s_mov_b32 s33, {i*32768}")
        a(f"buffer_load_dwordx4 v[{U+4*i}:{U+4*i+3}], v8, s[20:23], s33 offen")
    Lnz = a.newlabel("K1_NZ")
    a("s_cmp_lg_u32 s2, 0")
    a(f"s_cbranch_scc1 {Lnz}")
    a("v_mov_b32 v20, 0")
    a("v_mov_b32 v21, 0")
    a("v_mov_b32 v22, 0")
    a("v_mov_b32 v23, 0")
    a("v_lshlrev_b32 v9, 4, v0")
    a(f"v_add_u32 v9, {WS_HACC:#x}, v9")
    a("buffer_store_dwordx4 v[20:23], v9, s[24:27], 0 offen")
    a("buffer_store_dwordx4 v[20:23], v9, s[24:27], 0 offen offset:512")
    a.label(Lnz)
    Lnoln = a.newlabel("K1_NOLN")
    a("s_cmp_ge_u32 s3, 2")
    a(f"s_cbranch_scc1 {Lnoln}")
    a("s_waitcnt vmcnt(40)")
    for k in range(5):
        a(f"v_lshlrev_b32 v{24+2*k}, 16, v{10+k}")
        a(f"v_and_b32 v{25+2*k}, 0xffff0000, v{10+k}")
    a("s_lshl_b32 s33, s3, 2")
    a("v_lshl_add_u32 v9, v1, 4, s33")
    layernorm(a, 24, 34, 9, 44)
    a.label(Lnoln)
    a("s_waitcnt lgkmcnt(0)")
    a("s_barrier")
    ACC0, ACC1, WT, XP = 24, 32, 40, 48
    for k in range(16):
        a(f"v_mov_b32 v{ACC0+k}, 0")
    a("v_add_u32 v9, s31, v4")
    a("v_lshlrev_b32 v9, 3, v9")
    for i in range(36):
        if i % 6 == 0:
            for q in range(6):
                a(f"ds_read_b64 v[{XP+2*q}:{XP+2*q+1}], v9 offset:{XS + (i+q)*32}")
        a(f"s_waitcnt vmcnt({35-i+4 + (2 if False else 0)}) lgkmcnt({5 - i % 6})")
        a.unpack8(W + 4 * i, WT)
        a.pkfma8(ACC0, ACC1, WT, XP + 2 * (i % 6))
    a("s_lshl_b32 s33, s3, 12")
    a("v_lshlrev_b32 v9, 10, v4")
    a("v_add_u32 v9, s33, v9")
    a("v_lshl_add_u32 v9, v5, 5, v9")
    a(f"ds_write_b128 v9, v[{ACC0}:{ACC0+3}] offset:{RED}")
    a(f"ds_write_b128 v9, v[{ACC0+4}:{ACC0+7}] offset:{RED+16}")
    a(f"ds_write_b128 v9, v[{ACC1}:{ACC1+3}] offset:{RED+512}")
    a(f"ds_write_b128 v9, v[{ACC1+4}:{ACC1+7}] offset:{RED+512+16}")
    a("s_waitcnt lgkmcnt(0)")
    a("s_barrier")
    a("v_lshlrev_b32 v9, 2, v0")
    for k in range(16):
        a(f"ds_read_b32 v{24+k}, v9 offset:{RED + k*1024}")
    a("s_waitcnt lgkmcnt(0)")
    for k in range(1, 16):
        a(f"v_add_f32 v24, v24, v{24+k}")
    a("v_cvt_pk_bf16_f32 v24, v24, v24")
    a("v_lshlrev_b32 v9, 1, v0")
    a(f"ds_write_b16 v9, v24 offset:{QS}")
    a("s_waitcnt lgkmcnt(0)")
    a("s_barrier")
    a("v_lshlrev_b32 v9, 4, v5")
    a(f"ds_read_b128 v[24:27], v9 offset:{QS}")
    a(f"ds_read_b128 v[28:31], v9 offset:{QS+256}")
    a("s_waitcnt lgkmcnt(0)")
    a.unpack8(24, 32)
    a.unpack8(28, 40)
    a("s_waitcnt vmcnt(0)")
    for i in range(4):
        a.unpack8(U + 4 * i, 48)
        a(f"v_mul_f32 v{56+2*i}, v48, v32")
        a(f"v_mul_f32 v{57+2*i}, v48, v40")
        for k in range(1, 8):
            a(f"v_fmac_f32 v{56+2*i}, v{48+k}, v{32+k}")
            a(f"v_fmac_f32 v{57+2*i}, v{48+k}, v{40+k}")
    a.row16_reduce([56 + k for k in range(8)], "add")
    for k in range(8):
        a(f"v_mul_f32 v{56+k}, {f32bits(SCALE):#x}, v{56+k}")
        a(f"v_cvt_pk_bf16_f32 v{56+k}, v{56+k}, v{56+k}")
    a("s_lshl_b32 s33, s29, 2")
    a("s_add_u32 s33, s33, s3")
    a("s_lshl_b32 s33, s33, 10")
    a("s_lshl_b32 s34, s28, 4")
    a("s_add_u32 s33, s33, s34")
    a(f"s_add_u32 s33, s33, {WS_QF:#x}")
    a("v_lshlrev_b32 v9, 1, v4")
    a("v_add_u32 v9, s33, v9")
    a("v_cmp_eq_u32 vcc, 15, v5")
    a("s_and_saveexec_b64 s[42:43], vcc")
    for i in range(4):
        off = (i // 2) * 512 + (i % 2) * 8
        a(f"buffer_store_short v{56+2*i}, v9, s[24:27], 0 offen offset:{off}")
        a(f"s_mov_b32 s34, 32768")
        a(f"buffer_store_short v{57+2*i}, v9, s[24:27], s34 offen offset:{off}")
    a("s_mov_b64 exec, s[42:43]")
    a.label("K1_END")
    a("s_endpgm")
    return a.text(), dict(nvgpr=224, lds=8192 + 16384, grid=256, block=256)

def sw(m):
    return 4 * (m % 4) + (m // 4) % 4

def gen_k2():
    a = Asm(); a.end = "K2_END"
    CT = 0
    SB = 131072
    PB = 0
    MX = PB + 8192
    LS = MX + 512
    prologue(a, 256, [(4, 8), (10, 96)])
    a.srd(12, 4, 2 * 16384 * 1024)
    a.srd(24, 10, WS_SIZE)
    a("s_lshr_b32 s28, s2, 7")
    a("s_and_b32 s29, s2, 127")
    QF = 128
    a("v_lshlrev_b32 v3, 4, v1")
    a("s_lshl_b32 s30, s28, 15")
    a(f"s_add_u32 s30, s30, {WS_QF:#x}")
    for ks in range(32):
        if ks % 4 == 0 and ks:
            a("s_add_u32 s30, s30, 4096")
        a(f"buffer_load_dwordx4 v[{QF+4*ks}:{QF+4*ks+3}], v3, s[24:27], s30 offen offset:{(ks%4)*1024}")
    for s in range(16):
        a(f"v_xor_b32 v{8+s}, {s}, v1")
        a(f"v_lshlrev_b32 v{8+s}, 4, v{8+s}")
    a("s_lshl_b32 s30, s2, 17")
    a("s_lshl_b32 s31, s3, 15")
    a("s_add_u32 s30, s30, s31")
    for g in range(8):
        a(f"s_add_u32 s32, s31, {CT + g*4096}")
        a("s_mov_b32 m0, s32")
        if g:
            a("s_add_u32 s30, s30, 4096")
        else:
            a("s_nop 0")
        for r in range(4):
            m = 4 * g + r
            a(f"buffer_load_dwordx4 v{8+sw(m)}, s[12:15], s30 offen offset:{r*1024} lds")
    a("v_and_b32 v4, 31, v1")
    a("v_lshrrev_b32 v5, 5, v1")
    a("v_and_b32 v6, 3, v4")
    a("v_lshlrev_b32 v6, 2, v6")
    a("v_bfe_u32 v7, v4, 2, 2")
    a("v_or_b32 v6, v6, v7")
    a("v_lshlrev_b32 v7, 10, v4")
    a("v_add_u32 v7, s31, v7")
    AD = 24
    for k8 in range(8):
        a(f"v_add_u32 v{AD+k8}, {2*k8}, v5")
        a(f"v_xor_b32 v{AD+k8}, v{AD+k8}, v6")
        a(f"v_lshl_add_u32 v{AD+k8}, v{AD+k8}, 4, v7")
    S = 32
    AF = 64
    a("s_waitcnt vmcnt(0)")
    for half in range(2):
        for q in range(16):
            ks = half * 16 + q
            a(f"ds_read_b128 v[{AF+4*q}:{AF+4*q+3}], v{AD + ks%8} offset:{CT + (ks//8)*256}")
        for q in range(16):
            ks = half * 16 + q
            a(f"s_waitcnt lgkmcnt({15-q})")
            c = "0" if ks == 0 else f"v[{S}:{S+15}]"
            a(f"v_mfma_f32_32x32x16_bf16 v[{S}:{S+15}], v[{AF+4*q}:{AF+4*q+3}], v[{QF+4*ks}:{QF+4*ks+3}], {c}")
    a("s_nop 15")
    a(f"v_max3_f32 v48, v{S}, v{S+1}, v{S+2}")
    for k in range(3, 15, 2):
        a(f"v_max3_f32 v48, v48, v{S+k}, v{S+k+1}")
    a(f"v_max_f32 v48, v48, v{S+15}")
    a("v_mov_b32 v49, v48")
    a("s_nop 1")
    a("v_permlane32_swap_b32 v48, v49")
    a("s_nop 1")
    a("v_max_f32 v48, v48, v49")
    a("s_lshl_b32 s32, s3, 7")
    a("v_lshl_add_u32 v50, v4, 2, s32")
    a(f"v_add_u32 v50, {SB:#x}, v50")
    a(f"ds_write_b32 v50, v48 offset:{MX}")
    a("s_waitcnt lgkmcnt(0)")
    a("s_barrier")
    a("v_lshlrev_b32 v51, 2, v4")
    a(f"v_add_u32 v51, {SB:#x}, v51")
    for w in range(4):
        a(f"ds_read_b32 v{52+w}, v51 offset:{MX + w*128}")
    a("s_waitcnt lgkmcnt(0)")
    a("v_max3_f32 v48, v52, v53, v54")
    a("v_max_f32 v48, v48, v55")
    for k in range(16):
        a(f"v_sub_f32 v{S+k}, v{S+k}, v48")
    for k in range(16):
        a(f"v_exp_f32 v{S+k}, v{S+k}")
    a("s_nop 0")
    a(f"v_add_f32 v49, v{S}, v{S+1}")
    for k in range(2, 16):
        a(f"v_add_f32 v49, v49, v{S+k}")
    for k in range(8):
        a(f"v_cvt_pk_bf16_f32 v{56+k}, v{S+2*k}, v{S+2*k+1}")
    a("v_mov_b32 v52, v49")
    a("s_nop 1")
    a("v_permlane32_swap_b32 v49, v52")
    a("s_nop 1")
    a("v_add_f32 v49, v49, v52")
    a(f"ds_write_b32 v50, v49 offset:{LS}")
    a("s_lshl_b32 s32, s3, 11")
    a("v_lshl_add_u32 v53, v1, 4, s32")
    a(f"v_add_u32 v53, {SB:#x}, v53")
    a(f"ds_write_b128 v53, v[56:59] offset:{PB}")
    a(f"ds_write_b128 v53, v[60:63] offset:{PB+1024}")
    a("s_waitcnt lgkmcnt(0)")
    a("s_barrier")
    PF = 128
    a("v_lshlrev_b32 v53, 4, v1")
    a(f"v_add_u32 v53, {SB:#x}, v53")
    for T in range(8):
        a(f"ds_read_b128 v[{PF+4*T}:{PF+4*T+3}], v53 offset:{PB + T*1024}")
    for w in range(4):
        a(f"ds_read_b32 v{52+w}, v51 offset:{LS + w*128}")
    a("v_and_b32 v6, 15, v1")
    a("v_lshrrev_b32 v7, 2, v6")
    a("v_and_b32 v8, 3, v6")
    a("v_bfe_u32 v9, v1, 4, 1")
    a("v_lshlrev_b32 v10, 2, v5")
    a("v_add_u32 v10, v10, v7")
    a("v_lshlrev_b32 v10, 10, v10")
    a("s_lshl_b32 s32, s3, 8")
    a("v_add_u32 v10, s32, v10")
    a("v_and_b32 v11, 1, v8")
    a("v_lshl_add_u32 v10, v11, 3, v10")
    a("v_lshrrev_b32 v11, 1, v8")
    a("v_lshl_add_u32 v11, v9, 1, v11")
    a("v_lshlrev_b32 v12, 2, v7")
    a("v_add_u32 v12, v12, v5")
    TA = 24
    for ct in range(4):
        for sec in range(2):
            d = TA + 2 * ct + sec
            a(f"v_add_u32 v{d}, {4*ct}, v11")
            a(f"v_add_u32 v13, {2*sec}, v12")
            a(f"v_xor_b32 v{d}, v{d}, v13")
            a(f"v_lshl_add_u32 v{d}, v{d}, 4, v10")
            if sec:
                a(f"v_add_u32 v{d}, 8192, v{d}")
    for k in range(8):
        a(f"v_add_u32 v{16+k}, 0x10000, v{TA+k}")
    a("s_waitcnt lgkmcnt(0)")
    a("v_add_f32 v52, v52, v53")
    a("v_add_f32 v54, v54, v55")
    a("v_add_f32 v49, v52, v54")
    O = 160
    A2 = 64
    for T in range(8):
        wq, t = T // 2, T % 2
        base = TA if wq < 2 else 16
        off = CT + ((32 * wq + 16 * t) * 1024) % 65536
        for ct in range(4):
            for sec in range(2):
                a(f"ds_read_b64_tr_b16 v[{A2+(T%2)*16+4*ct+2*sec}:{A2+(T%2)*16+4*ct+2*sec+1}], v{base+2*ct+sec} offset:{off}")
        a("s_waitcnt lgkmcnt(0)")
        for ct in range(4):
            c = "0" if T == 0 else f"v[{O+16*ct}:{O+16*ct+15}]"
            a(f"v_mfma_f32_32x32x16_bf16 v[{O+16*ct}:{O+16*ct+15}], v[{A2+(T%2)*16+4*ct}:{A2+(T%2)*16+4*ct+3}], v[{PF+4*T}:{PF+4*T+3}], {c}")
    Lns = a.newlabel("K2_NS")
    a("s_cmp_lg_u32 s3, 0")
    a(f"s_cbranch_scc1 {Lns}")
    a("s_lshl_b32 s32, s28, 5")
    a("v_add_u32 v6, s32, v4")
    a("v_lshlrev_b32 v6, 10, v6")
    a("s_lshl_b32 s32, s29, 3")
    a(f"s_add_u32 s32, s32, {WS_STAT:#x}")
    a("v_add_u32 v6, s32, v6")
    a("v_cmp_gt_u32 vcc, 32, v1")
    a("s_and_saveexec_b64 s[42:43], vcc")
    a("buffer_store_dwordx2 v[48:49], v6, s[24:27], 0 offen")
    a("s_mov_b64 exec, s[42:43]")
    a.label(Lns)
    a("s_lshl_b32 s32, s28, 5")
    a("v_add_u32 v6, s32, v4")
    a("v_lshlrev_b32 v6, 17, v6")
    a("s_lshl_b32 s32, s3, 15")
    a("s_lshl_b32 s33, s29, 7")
    a("s_add_u32 s32, s32, s33")
    a(f"s_add_u32 s32, s32, {WS_PART:#x}")
    a("v_add_u32 v6, s32, v6")
    a("v_lshl_add_u32 v6, v5, 3, v6")
    a("s_nop 7")
    for ct in range(4):
        for g in range(4):
            r = O + 16 * ct + 4 * g
            d = 64 + 2 * ((ct * 4 + g) % 8)
            a(f"v_cvt_pk_bf16_f32 v{d}, v{r}, v{r+1}")
            a(f"v_cvt_pk_bf16_f32 v{d+1}, v{r+2}, v{r+3}")
            off = (ct % 2) * 64 + g * 16
            so = "0"
            if ct >= 2:
                a("s_mov_b32 s33, 16384")
                so = "s33"
            a(f"buffer_store_dwordx2 v[{d}:{d+1}], v6, s[24:27], {so} offen offset:{off}")
    a.label("K2_END")
    a("s_endpgm")
    return a.text(), dict(nvgpr=256, lds=131072 + 8192 + 1024, grid=256, block=256)

def gen_k3():
    a = Asm(); a.end = "K3_END"
    WG_, XS, RED = 0, 4096, 8192
    prologue(a, 256, [(4, 32), (10, 96)])
    a.srd(12, 4, 512 * 8192)
    a.srd(24, 10, WS_SIZE)
    a("s_and_b32 s28, s2, 31")
    a("s_lshr_b32 s29, s2, 5")
    a("s_lshl_b32 s30, s28, 10")
    a(f"s_add_u32 s30, s30, {WS_STAT:#x}")
    a("v_lshlrev_b32 v3, 3, v1")
    a("s_add_u32 s31, s30, 32768")
    a("buffer_load_dwordx2 v[8:9], v3, s[24:27], s30 offen")
    a("buffer_load_dwordx2 v[10:11], v3, s[24:27], s30 offen offset:512")
    a("buffer_load_dwordx2 v[12:13], v3, s[24:27], s31 offen")
    a("buffer_load_dwordx2 v[14:15], v3, s[24:27], s31 offen offset:512")
    P = 64
    a("s_lshl_b32 s30, s28, 3")
    a("s_add_u32 s30, s30, s29")
    a("s_lshl_b32 s30, s30, 14")
    a("s_lshl_b32 s31, s3, 12")
    a("s_add_u32 s30, s30, s31")
    a(f"s_add_u32 s30, s30, {WS_PART:#x}")
    a(f"s_add_u32 s31, s30, {32*8*16384:#x}")
    a("v_lshlrev_b32 v4, 4, v1")
    for b in range(2):
        for k in range(4):
            a(f"buffer_load_dwordx4 v[{P+16*b+4*k}:{P+16*b+4*k+3}], v4, s[24:27], s{30+b} offen offset:{k*1024}")
    U = 96
    a("v_lshrrev_b32 v5, 4, v1")
    a("v_and_b32 v6, 15, v1")
    a("s_lshl_b32 s32, s29, 6")
    a("s_lshl_b32 s33, s3, 4")
    a("s_add_u32 s32, s32, s33")
    a("v_add_u32 v7, s32, v5")
    a("v_lshlrev_b32 v7, 13, v7")
    a("s_lshl_b32 s32, s28, 8")
    a("v_lshl_add_u32 v16, v6, 4, s32")
    a("v_add_u32 v7, v7, v16")
    for i in range(4):
        a(f"s_mov_b32 s33, {i*32768}")
        a(f"buffer_load_dwordx4 v[{U+4*i}:{U+4*i+3}], v7, s[12:15], s33 offen")
    a("s_waitcnt vmcnt(12)")
    for b in range(2):
        m0, l0, m1, l1 = 8 + 4 * b, 9 + 4 * b, 10 + 4 * b, 11 + 4 * b
        a(f"v_max_f32 v16, v{m0}, v{m1}")
        a.wave_reduce(16, "max")
        a("v_readlane_b32 s34, v16, 63")
        a("s_nop 3")
        a(f"v_subrev_f32 v{m0}, s34, v{m0}")
        a(f"v_subrev_f32 v{m1}, s34, v{m1}")
        a(f"v_exp_f32 v{m0}, v{m0}")
        a(f"v_exp_f32 v{m1}, v{m1}")
        a("s_nop 0")
        a(f"v_mul_f32 v16, v{m0}, v{l0}")
        a(f"v_fmac_f32 v16, v{m1}, v{l1}")
        a.wave_reduce(16, "add")
        a("v_readlane_b32 s34, v16, 63")
        a("s_nop 3")
        a("v_mov_b32 v16, s34")
        a("v_rcp_f32 v17, v16")
        a("s_nop 0")
        a("v_fma_f32 v18, -v16, v17, 1.0")
        a("v_fma_f32 v17, v18, v17, v17")
        a(f"v_mul_f32 v{m0}, v{m0}, v17")
        a(f"v_mul_f32 v{m1}, v{m1}, v17")
    a("s_lshl_b32 s32, s3, 10")
    a("v_lshl_add_u32 v16, v1, 2, s32")
    for b in range(2):
        a(f"ds_write_b32 v16, v{8+4*b} offset:{WG_ + b*512}")
        a(f"ds_write_b32 v16, v{10+4*b} offset:{WG_ + b*512 + 256}")
    a("v_lshrrev_b32 v17, 3, v1")
    a("s_lshl_b32 s33, s3, 7")
    a("s_add_u32 s33, s33, s32")
    a("v_lshl_add_u32 v17, v17, 2, s33")
    a("s_waitcnt lgkmcnt(0)")
    for b in range(2):
        for k in range(4):
            a(f"ds_read_b32 v{20+4*b+k}, v17 offset:{WG_ + b*512 + k*32}")
    ACC = 32
    for k in range(16):
        a(f"v_mov_b32 v{ACC+k}, 0")
    a("s_waitcnt vmcnt(4) lgkmcnt(0)")
    for b in range(2):
        for k in range(4):
            a.unpack8(P + 16 * b + 4 * k, 48)
            for e in range(8):
                a(f"v_fmac_f32 v{ACC+8*b+e}, v{48+e}, v{20+4*b+k}")
    a("v_lshrrev_b32 v17, 3, v1")
    a("v_and_b32 v18, 7, v1")
    a("s_lshl_b32 s32, s3, 12")
    a("v_lshl_add_u32 v17, v17, 9, s32")
    a("v_lshl_add_u32 v17, v18, 5, v17")
    for b in range(2):
        a(f"ds_write_b128 v17, v[{ACC+8*b}:{ACC+8*b+3}] offset:{RED + b*256}")
        a(f"ds_write_b128 v17, v[{ACC+8*b+4}:{ACC+8*b+7}] offset:{RED + b*256 + 16}")
    a("s_waitcnt lgkmcnt(0)")
    a("s_barrier")
    a("v_and_b32 v17, 127, v0")
    a("v_lshrrev_b32 v18, 7, v0")
    a("v_lshlrev_b32 v19, 13, v18")
    a("v_lshl_add_u32 v19, v17, 2, v19")
    for k in range(16):
        a(f"ds_read_b32 v{32+k}, v19 offset:{RED + k*512}")
    a("s_waitcnt lgkmcnt(0)")
    for k in range(1, 16):
        a(f"v_add_f32 v32, v32, v{32+k}")
    a("s_barrier")
    a("v_lshlrev_b32 v19, 2, v0")
    a(f"ds_write_b32 v19, v32 offset:{RED}")
    a("s_waitcnt lgkmcnt(0)")
    a("s_barrier")
    a("v_lshlrev_b32 v19, 2, v17")
    a(f"ds_read_b32 v32, v19 offset:{RED}")
    a(f"ds_read_b32 v33, v19 offset:{RED+512}")
    a("v_and_b32 v20, 63, v17")
    a("v_lshrrev_b32 v21, 6, v17")
    a("v_lshlrev_b32 v20, 3, v20")
    a("v_lshl_add_u32 v20, v21, 2, v20")
    a("s_waitcnt lgkmcnt(0)")
    a("v_add_f32 v32, v32, v33")
    a(f"ds_write_b32 v20, v32 offset:{XS}")
    a("s_waitcnt lgkmcnt(0)")
    a("s_barrier")
    a("s_lshl_b32 s32, s3, 4")
    a("v_add_u32 v19, s32, v5")
    a("v_lshlrev_b32 v19, 3, v19")
    for i in range(4):
        a(f"ds_read_b64 v[{20+2*i}:{21+2*i}], v19 offset:{XS + i*32}")
    for k in range(16):
        a(f"v_mov_b32 v{ACC+k}, 0")
    a("s_waitcnt vmcnt(0) lgkmcnt(0)")
    for i in range(4):
        a.unpack8(U + 4 * i, 48)
        a.pkfma8(ACC, ACC + 8, 48, 20 + 2 * i)
    a("s_lshl_b32 s33, s3, 12")
    a("v_lshlrev_b32 v19, 10, v5")
    a("v_add_u32 v19, s33, v19")
    a("v_lshl_add_u32 v19, v6, 5, v19")
    a(f"ds_write_b128 v19, v[{ACC}:{ACC+3}] offset:{RED}")
    a(f"ds_write_b128 v19, v[{ACC+4}:{ACC+7}] offset:{RED+16}")
    a(f"ds_write_b128 v19, v[{ACC+8}:{ACC+11}] offset:{RED+512}")
    a(f"ds_write_b128 v19, v[{ACC+12}:{ACC+15}] offset:{RED+512+16}")
    a("s_waitcnt lgkmcnt(0)")
    a("s_barrier")
    a("v_lshlrev_b32 v19, 2, v0")
    for k in range(16):
        a(f"ds_read_b32 v{32+k}, v19 offset:{RED + k*1024}")
    a("s_waitcnt lgkmcnt(0)")
    for k in range(1, 16):
        a(f"v_add_f32 v32, v32, v{32+k}")
    a("s_lshl_b32 s32, s28, 3")
    a("s_add_u32 s32, s32, s29")
    a("s_lshl_b32 s32, s32, 10")
    a(f"s_add_u32 s32, s32, {WS_CTXP:#x}")
    a("buffer_store_dword v32, v19, s[24:27], s32 offen")
    a.label("K3_END")
    a("s_endpgm")
    return a.text(), dict(nvgpr=112, lds=8192 + 16384, grid=256, block=256)

def gen_k4():
    a = Asm(); a.end = "K4_END"
    XS, RED = 0, 4096
    prologue(a, 288, [(4, 40), (10, 96)])
    a.srd(12, 4, 4096 * 1152)
    a.srd(24, 10, WS_SIZE)
    a("s_and_b32 s28, s2, 31")
    a("s_lshr_b32 s29, s2, 5")
    a("s_lshl_b32 s30, s28, 13")
    a(f"s_add_u32 s30, s30, {WS_CTXP:#x}")
    a("v_lshlrev_b32 v3, 2, v0")
    for j in range(4):
        a(f"buffer_load_dword v{8+j}, v3, s[24:27], s30 offen offset:{j*1024}")
    a("s_add_u32 s30, s30, 4096")
    for j in range(4):
        a(f"buffer_load_dword v{12+j}, v3, s[24:27], s30 offen offset:{j*1024}")
    W = 64
    a("v_lshrrev_b32 v4, 3, v1")
    a("v_and_b32 v5, 7, v1")
    a("s_lshl_b32 s31, s28, 7")
    a("s_lshl_b32 s32, s3, 5")
    a("s_add_u32 s31, s31, s32")
    a("v_add_u32 v6, s31, v4")
    a("s_movk_i32 s32, 1152")
    a("v_mul_lo_u32 v6, v6, s32")
    a("s_lshl_b32 s32, s29, 7")
    a("v_lshl_add_u32 v7, v5, 4, s32")
    a("v_add_u32 v6, v6, v7")
    for k in range(4):
        a(f"s_mov_b32 s33, {k*8*1152}")
        a(f"buffer_load_dwordx4 v[{W+4*k}:{W+4*k+3}], v6, s[12:15], s33 offen")
    a("s_waitcnt vmcnt(4)")
    for j in range(1, 8):
        a(f"v_add_f32 v8, v8, v{8+j}")
    a.rne_bf16(8, 8)
    a("v_and_b32 v9, 127, v0")
    a("v_lshrrev_b32 v10, 7, v0")
    a("v_lshlrev_b32 v9, 3, v9")
    a("v_lshl_add_u32 v9, v10, 2, v9")
    a(f"ds_write_b32 v9, v8 offset:{XS}")
    a("s_waitcnt lgkmcnt(0)")
    a("s_barrier")
    a("s_lshl_b32 s32, s3, 5")
    a("v_add_u32 v9, s32, v4")
    a("v_lshlrev_b32 v9, 3, v9")
    for k in range(4):
        a(f"ds_read_b64 v[{20+2*k}:{21+2*k}], v9 offset:{XS + k*64}")
    ACC = 32
    for k in range(16):
        a(f"v_mov_b32 v{ACC+k}, 0")
    a("s_waitcnt vmcnt(0) lgkmcnt(0)")
    for k in range(4):
        a.unpack8(W + 4 * k, 48)
        a.pkfma8(ACC, ACC + 8, 48, 20 + 2 * k)
    a("s_lshl_b32 s32, s3, 12")
    a("v_lshl_add_u32 v9, v4, 9, s32")
    a("v_lshl_add_u32 v9, v5, 5, v9")
    for b in range(2):
        a(f"ds_write_b128 v9, v[{ACC+8*b}:{ACC+8*b+3}] offset:{RED + b*256}")
        a(f"ds_write_b128 v9, v[{ACC+8*b+4}:{ACC+8*b+7}] offset:{RED + b*256 + 16}")
    a("s_waitcnt lgkmcnt(0)")
    a("s_barrier")
    a("v_and_b32 v17, 127, v0")
    a("v_lshrrev_b32 v18, 7, v0")
    a("v_lshlrev_b32 v19, 13, v18")
    a("v_lshl_add_u32 v19, v17, 2, v19")
    for k in range(16):
        a(f"ds_read_b32 v{32+k}, v19 offset:{RED + k*512}")
    a("s_waitcnt lgkmcnt(0)")
    for k in range(1, 16):
        a(f"v_add_f32 v32, v32, v{32+k}")
    a("v_and_b32 v20, 63, v17")
    a("v_lshrrev_b32 v21, 6, v17")
    a("s_movk_i32 s32, 2304")
    a("v_mul_lo_u32 v21, v21, s32")
    a("v_lshl_add_u32 v20, v20, 2, v21")
    a("s_lshl_b32 s32, s29, 8")
    a(f"s_add_u32 s32, s32, {WS_HACC:#x}")
    a("buffer_atomic_add_f32 v32, v20, s[24:27], s32 offen")
    a.label("K4_END")
    a("s_endpgm")
    return a.text(), dict(nvgpr=80, lds=4096 + 16384, grid=288, block=256)

def load_h(a, sx, sws):
    for k in range(4):
        a(f"buffer_load_dword v{10+k}, v3, s[{sx}:{sx+3}], s30 offen offset:{k*256}")
    a("v_lshlrev_b32 v15, 3, v1")
    a("s_lshl_b32 s31, s30, 1")
    a(f"s_add_u32 s31, s31, {WS_HACC:#x}")
    for k in range(4):
        a(f"buffer_load_dwordx2 v[{16+2*k}:{17+2*k}], v15, s[{sws}:{sws+3}], s31 offen offset:{k*512}")
    a("s_mov_b64 s[42:43], exec")
    a("s_mov_b64 exec, s[44:45]")
    a(f"buffer_load_dword v14, v3, s[{sx}:{sx+3}], s30 offen offset:1024")
    a(f"buffer_load_dwordx2 v[24:25], v15, s[{sws}:{sws+3}], s31 offen offset:2048")
    a("s_mov_b64 exec, s[42:43]")

def gen_k5():
    a = Asm(); a.end = "K5_END"
    XS, AS, RED = 0, 4608, 8192
    prologue(a, 288, [(4, 0), (6, 56), (8, 64), (34, 72), (10, 96)])
    a.srd(12, 4, 2304)
    a.srd(16, 6, 576 * 9216)
    a.srd(20, 8, 576 * 9216)
    a.srd(36, 34, 4608 * 1152)
    a.srd(24, 10, WS_SIZE)
    a("v_cmp_gt_u32 s[44:45], 32, v1")
    a("v_mov_b32 v14, 0")
    a("v_mov_b32 v24, 0")
    a("v_mov_b32 v25, 0")
    a("s_mul_i32 s30, s3, 1152")
    a("v_lshlrev_b32 v3, 2, v1")
    L1 = a.newlabel("K5_NOX")
    a("s_cmp_ge_u32 s3, 2")
    a(f"s_cbranch_scc1 {L1}")
    load_h(a, 12, 24)
    a.label(L1)
    a("s_and_b32 s28, s2, 7")
    a("s_lshr_b32 s29, s2, 3")
    a("s_and_b32 s31, s29, 3")
    a("s_lshr_b32 s29, s29, 2")
    a("s_lshl_b32 s29, s29, 3")
    a("s_add_u32 s29, s29, s28")
    a("s_lshl_b32 s29, s29, 2")
    a("s_add_u32 s29, s29, s31")
    G = 64
    a("v_lshrrev_b32 v4, 1, v1")
    a("v_and_b32 v5, 1, v1")
    a("s_and_b32 s31, s3, 1")
    a("s_mul_i32 s31, s31, 288")
    a("v_add_u32 v6, s31, v4")
    a("s_movk_i32 s32, 9216")
    a("v_mul_lo_u32 v6, v6, s32")
    a("s_lshl_b32 s32, s29, 5")
    a("v_lshl_add_u32 v7, v5, 4, s32")
    a("v_add_u32 v6, v6, v7")
    Lup, Ld = a.newlabel("K5_UP"), a.newlabel("K5_GD")
    a("s_cmp_ge_u32 s3, 2")
    a(f"s_cbranch_scc1 {Lup}")
    for k in range(9):
        a(f"s_mov_b32 s33, {k*32*9216}")
        a(f"buffer_load_dwordx4 v[{G+4*k}:{G+4*k+3}], v6, s[16:19], s33 offen")
    a(f"s_branch {Ld}")
    a.label(Lup)
    for k in range(9):
        a(f"s_mov_b32 s33, {k*32*9216}")
        a(f"buffer_load_dwordx4 v[{G+4*k}:{G+4*k+3}], v6, s[20:23], s33 offen")
    a.label(Ld)
    D = 100
    a("s_lshl_b32 s32, s29, 4")
    a("s_lshl_b32 s33, s3, 2")
    a("s_add_u32 s32, s32, s33")
    a("s_mul_i32 s32, s32, 1152")
    a("v_lshlrev_b32 v8, 4, v1")
    for q in range(4):
        a(f"buffer_load_dwordx4 v[{D+4*q}:{D+4*q+3}], v8, s[36:39], s32 offen offset:{q*1152}")
    for k in range(16):
        a(f"v_mov_b32 v{D+16+k}, 0")
    a("v_cmp_gt_u32 vcc, 8, v1")
    a("s_and_saveexec_b64 s[42:43], vcc")
    a("s_add_u32 s33, s32, 1024")
    for q in range(4):
        a(f"buffer_load_dwordx4 v[{D+16+4*q}:{D+16+4*q+3}], v8, s[36:39], s33 offen offset:{q*1152}")
    a("s_mov_b64 exec, s[42:43]")
    L2 = a.newlabel("K5_NOLN")
    a("s_cmp_ge_u32 s3, 2")
    a(f"s_cbranch_scc1 {L2}")
    a("s_waitcnt vmcnt(17)")
    for k in range(5):
        a(f"v_lshlrev_b32 v{28+2*k}, 16, v{10+k}")
        a(f"v_and_b32 v{29+2*k}, 0xffff0000, v{10+k}")
    for k in range(10):
        a.rne_bf16(16 + k, 16 + k)
        a(f"v_add_f32 v{28+k}, v{28+k}, v{16+k}")
        a.rne_bf16(28 + k, 28 + k)
    a("s_lshl_b32 s33, s3, 2")
    a("v_lshl_add_u32 v9, v1, 4, s33")
    layernorm(a, 28, 38, 9, 44)
    a.label(L2)
    a("s_waitcnt lgkmcnt(0)")
    a("s_barrier")
    ACC, WT, XP = 16, 32, 40
    for k in range(16):
        a(f"v_mov_b32 v{ACC+k}, 0")
    a("v_add_u32 v9, s31, v4")
    a("v_lshlrev_b32 v9, 3, v9")
    for k in range(9):
        a(f"ds_read_b64 v[{XP+2*k}:{XP+2*k+1}], v9 offset:{XS + k*256}")
    for k in range(9):
        a(f"s_waitcnt vmcnt({8-k+8}) lgkmcnt({8-k})")
        a.unpack8(G + 4 * k, WT)
        a.pkfma8(ACC, ACC + 8, WT, XP + 2 * k)
    a("s_lshl_b32 s32, s3, 12")
    a("v_lshl_add_u32 v9, v4, 7, s32")
    a("v_lshl_add_u32 v9, v5, 5, v9")
    for b in range(2):
        a(f"ds_write_b128 v9, v[{ACC+8*b}:{ACC+8*b+3}] offset:{RED + b*64}")
        a(f"ds_write_b128 v9, v[{ACC+8*b+4}:{ACC+8*b+7}] offset:{RED + b*64 + 16}")
    a("s_waitcnt lgkmcnt(0)")
    a("s_barrier")
    a("v_and_b32 v9, 31, v0")
    a("v_lshrrev_b32 v10, 5, v0")
    a("v_lshlrev_b32 v11, 11, v10")
    a("v_lshl_add_u32 v11, v9, 2, v11")
    for k in range(16):
        a(f"ds_read_b32 v{16+k}, v11 offset:{RED + k*128}")
    a("s_waitcnt lgkmcnt(0)")
    for k in range(1, 16):
        a(f"v_add_f32 v16, v16, v{16+k}")
    a("s_barrier")
    a("v_lshlrev_b32 v11, 2, v0")
    a(f"ds_write_b32 v11, v16 offset:{RED}")
    a("s_waitcnt lgkmcnt(0)")
    a("s_barrier")
    a("v_lshlrev_b32 v11, 2, v9")
    for k in range(8):
        a(f"ds_read_b32 v{16+k}, v11 offset:{RED + k*128}")
    a("s_waitcnt lgkmcnt(0)")
    a("v_add_f32 v16, v16, v17")
    a("v_add_f32 v18, v18, v19")
    a("v_add_f32 v16, v16, v18")
    a("v_add_f32 v20, v20, v21")
    a("v_add_f32 v22, v22, v23")
    a("v_add_f32 v20, v20, v22")
    a.rne_bf16(16, 16)
    a.rne_bf16(20, 20)
    a(f"v_mul_f32 v17, {f32bits(-math.log2(math.e)):#x}, v16")
    a("v_exp_f32 v17, v17")
    a("s_nop 0")
    a("v_add_f32 v17, 1.0, v17")
    a("v_rcp_f32 v18, v17")
    a("s_nop 0")
    a("v_mul_f32 v19, v16, v18")
    a("v_fma_f32 v21, -v19, v17, v16")
    a("v_fma_f32 v19, v21, v18, v19")
    a.rne_bf16(19, 19)
    a("v_mul_f32 v19, v19, v20")
    a.rne_bf16(19, 19)
    a("v_and_b32 v10, 15, v9")
    a("v_lshrrev_b32 v11, 4, v9")
    a("v_lshlrev_b32 v10, 3, v10")
    a("v_lshl_add_u32 v10, v11, 2, v10")
    a("v_cmp_gt_u32 vcc, 32, v0")
    a("s_and_saveexec_b64 s[42:43], vcc")
    a(f"ds_write_b32 v10, v19 offset:{AS}")
    a("s_mov_b64 exec, s[42:43]")
    a("s_waitcnt lgkmcnt(0)")
    a("s_barrier")
    a("s_lshl_b32 s32, s3, 5")
    a("v_mov_b32 v9, s32")
    for q in range(4):
        a(f"ds_read_b64 v[{XP+2*q}:{XP+2*q+1}], v9 offset:{AS + q*8}")
    A1, A2 = 16, 48
    for k in range(16):
        a(f"v_mov_b32 v{A1+k}, 0")
        a(f"v_mov_b32 v{A2+k}, 0")
    a("s_waitcnt vmcnt(0) lgkmcnt(0)")
    for q in range(4):
        a.unpack8(D + 4 * q, WT)
        a.pkfma8(A1, A1 + 8, WT, XP + 2 * q)
        a.unpack8(D + 16 + 4 * q, WT)
        a.pkfma8(A2, A2 + 8, WT, XP + 2 * q)
    a("s_mul_i32 s32, s3, 4608")
    a("v_lshl_add_u32 v9, v1, 5, s32")
    for b in range(2):
        a(f"ds_write_b128 v9, v[{A1+8*b}:{A1+8*b+3}] offset:{RED + b*2304}")
        a(f"ds_write_b128 v9, v[{A1+8*b+4}:{A1+8*b+7}] offset:{RED + b*2304 + 16}")
    a("v_cmp_gt_u32 vcc, 8, v1")
    a("s_and_saveexec_b64 s[42:43], vcc")
    for b in range(2):
        a(f"ds_write_b128 v9, v[{A2+8*b}:{A2+8*b+3}] offset:{RED + b*2304 + 2048}")
        a(f"ds_write_b128 v9, v[{A2+8*b+4}:{A2+8*b+7}] offset:{RED + b*2304 + 2048 + 16}")
    a("s_mov_b64 exec, s[42:43]")
    a("s_waitcnt lgkmcnt(0)")
    a("s_barrier")
    a("v_lshlrev_b32 v9, 4, v0")
    for w in range(4):
        a(f"ds_read_b128 v[{16+4*w}:{19+4*w}], v9 offset:{RED + w*4608}")
    a("v_cmp_gt_u32 vcc, 32, v0")
    a("s_and_saveexec_b64 s[42:43], vcc")
    for w in range(4):
        a(f"ds_read_b128 v[{32+4*w}:{35+4*w}], v9 offset:{RED + w*4608 + 4096}")
    a("s_mov_b64 exec, s[42:43]")
    a("s_waitcnt lgkmcnt(0)")
    for e in range(4):
        for base in (16, 32):
            a(f"v_add_f32 v{base+e}, v{base+e}, v{base+4+e}")
            a(f"v_add_f32 v{base+8+e}, v{base+8+e}, v{base+12+e}")
            a(f"v_add_f32 v{base+e}, v{base+e}, v{base+8+e}")
    a("s_mul_i32 s32, s2, 4608")
    a(f"s_add_u32 s32, s32, {WS_OUTP:#x}")
    a("buffer_store_dwordx4 v[16:19], v9, s[24:27], s32 offen")
    a("s_add_u32 s33, s32, 4096")
    a("s_and_saveexec_b64 s[42:43], vcc")
    a("buffer_store_dwordx4 v[32:35], v9, s[24:27], s33 offen")
    a("s_mov_b64 exec, s[42:43]")
    a.label("K5_END")
    a("s_endpgm")
    return a.text(), dict(nvgpr=136, lds=8192 + 4 * 4608, grid=288, block=256)

def gen_k6():
    a = Asm(); a.end = "K6_END"
    prologue(a, 72, [(4, 0), (6, 80), (10, 96)])
    a.srd(12, 4, 2304)
    a.srd(16, 6, 2304)
    a.srd(24, 10, WS_SIZE)
    a("v_and_b32 v3, 3, v0")
    a("v_lshrrev_b32 v4, 2, v0")
    a("s_movk_i32 s30, 4608")
    a("v_mul_lo_u32 v5, v4, s30")
    a("v_lshl_add_u32 v5, v3, 4, v5")
    a("s_lshl_b32 s31, s2, 6")
    a(f"s_add_u32 s31, s31, {WS_OUTP:#x}")
    for k in range(4):
        a(f"s_add_u32 s32, s31, {k*64*4608}")
        a(f"buffer_load_dwordx4 v[{8+4*k}:{11+4*k}], v5, s[24:27], s32 offen")
    for e in range(4):
        a(f"v_mov_b32 v{24+e}, 0")
    a("v_cmp_gt_u32 vcc, 32, v4")
    a("s_and_saveexec_b64 s[42:43], vcc")
    a(f"s_add_u32 s32, s31, {4*64*4608}")
    a("buffer_load_dwordx4 v[24:27], v5, s[24:27], s32 offen")
    a("s_mov_b64 exec, s[42:43]")
    a("s_lshl_b32 s32, s2, 5")
    a("v_lshlrev_b32 v6, 1, v0")
    a("v_lshlrev_b32 v7, 2, v0")
    a("s_lshl_b32 s33, s2, 6")
    a(f"s_add_u32 s33, s33, {WS_HACC:#x}")
    a("v_cmp_gt_u32 vcc, 16, v0")
    a("s_and_saveexec_b64 s[42:43], vcc")
    a("buffer_load_ushort v28, v6, s[12:15], s32 offen")
    a("buffer_load_dword v29, v7, s[24:27], s33 offen")
    a("s_mov_b64 exec, s[42:43]")
    a("s_waitcnt vmcnt(0)")
    for e in range(4):
        a(f"v_add_f32 v{8+e}, v{8+e}, v{12+e}")
        a(f"v_add_f32 v{16+e}, v{16+e}, v{20+e}")
        a(f"v_add_f32 v{8+e}, v{8+e}, v{16+e}")
        a(f"v_add_f32 v{8+e}, v{8+e}, v{24+e}")
    a("v_lshlrev_b32 v5, 4, v0")
    a("ds_write_b128 v5, v[8:11]")
    a("s_waitcnt lgkmcnt(0)")
    a("s_barrier")
    a("v_and_b32 v3, 15, v0")
    a("v_lshrrev_b32 v4, 4, v0")
    a("v_lshlrev_b32 v5, 8, v4")
    a("v_lshl_add_u32 v5, v3, 2, v5")
    for k in range(4):
        a(f"ds_read_b32 v{8+k}, v5 offset:{k*64}")
    a("s_waitcnt lgkmcnt(0)")
    a("v_add_f32 v8, v8, v9")
    a("v_add_f32 v10, v10, v11")
    a("v_add_f32 v8, v8, v10")
    a("s_barrier")
    a("v_lshlrev_b32 v5, 2, v0")
    a("ds_write_b32 v5, v8")
    a("s_waitcnt lgkmcnt(0)")
    a("s_barrier")
    a("v_cmp_gt_u32 vcc, 16, v0")
    a("s_and_saveexec_b64 s[42:43], vcc")
    a("s_cbranch_execz K6_END")
    for k in range(16):
        a(f"ds_read_b32 v{8+k}, v5 offset:{k*64}")
    a("s_waitcnt lgkmcnt(0)")
    for k in range(1, 16):
        a(f"v_add_f32 v8, v8, v{8+k}")
    a.rne_bf16(8, 8)
    a("v_lshlrev_b32 v28, 16, v28")
    a.rne_bf16(29, 29)
    a("v_add_f32 v28, v28, v29")
    a.rne_bf16(28, 28)
    a("v_add_f32 v28, v28, v8")
    a("v_cvt_pk_bf16_f32 v28, v28, v28")
    a("buffer_store_short v28, v6, s[16:19], s32 offen")
    a.label("K6_END")
    a("s_endpgm")
    return a.text(), dict(nvgpr=32, lds=4096, grid=72, block=256)

HEADER = open("sequential_preLN__compressed_kv_cla__swiglu_ffn__decode.s.ref").read().split("; Override")[0]

def main(out):
    ks = [("k1_kernel", gen_k1), ("k2_kernel", gen_k2), ("k3_kernel", gen_k3), ("k4_kernel", gen_k4), ("k5_kernel", gen_k5), ("k6_kernel", gen_k6)]
    s = HEADER
    bodies = []
    for n, g in ks:
        t, info = g()
        bodies.append((n, t, info))
        s += f"; @launch kernel={n} grid=({info['grid']},1,1) block=({info['block']},1,1) lds={info['lds']}\n"
    s += '.amdgcn_target "amdgcn-amd-amdhsa--gfx950"\n.text\n'
    for n, t, info in bodies:
        s += kernel_header(n) + t
    s += '.section .rodata,"a"\n'
    for n, t, info in bodies:
        s += kernel_desc(n, info["nvgpr"])
    open(out, "w").write(s)

if __name__ == "__main__":
    main(sys.argv[1] if len(sys.argv) > 1 else "sequential_preLN__compressed_kv_cla__swiglu_ffn__decode.s")
```
